```python
import torch

def _softmax(x, axis=-1):
    return torch.softmax(x, dim=axis)
def _gelu(x):
    return torch.nn.functional.gelu(x, approximate="tanh")
def _silu(x):
    return torch.nn.functional.silu(x)
def _sigmoid(x):
    return torch.sigmoid(x)
def _layernorm(x, axis=-1, eps=1e-5):
    m = x.mean(dim=axis, keepdim=True)
    v = x.var(dim=axis, keepdim=True, unbiased=False)
    return (x - m) / torch.sqrt(v + eps)
def _scatter_add(tgt, idx, src, axis=0):
    return tgt.clone().index_add_(axis, idx, src)
def _segment_sum(src, seg, n):
    out = torch.zeros((n,) + src.shape[1:], dtype=src.dtype)
    return out.index_add_(0, seg, src)
def _pad(x, pw):
    flat = tuple(v for pair in reversed(pw) for v in pair)
    return torch.nn.functional.pad(x, flat)

kernel_name = 'recurrent_scan__mha_block__glu_gated_glu__prompt'

def setup_inputs():

    _w = (lambda a: (lambda t: t.to(torch.bfloat16) if t.is_floating_point() else t)(torch.as_tensor(a)))
    def _A_setup():
        B, S, D, H = 1, 2048, 512, 32
        return {
            "x": _w((lambda *s: torch.randn(*s, dtype=torch.bfloat16) * 0.05)(B, S, D)),
            "wqkv": _w((lambda *s: torch.randn(*s, dtype=torch.bfloat16) * 0.05)(D, 3 * D)),
            "wo": _w((lambda *s: torch.randn(*s, dtype=torch.bfloat16) * 0.05)(D, D)),
        }
    _A_in = _A_setup()

    def _B_setup():
        B, S, D, F = 1, 2048, 512, 1792
        return {
            "x": _w((lambda *s: torch.randn(*s, dtype=torch.bfloat16) * 0.05)(B, S, D)),
            "w_gate": _w((lambda *s: torch.randn(*s, dtype=torch.bfloat16) * 0.05)(D, F)),
            "w_up": _w((lambda *s: torch.randn(*s, dtype=torch.bfloat16) * 0.05)(D, F)),
            "w_down": _w((lambda *s: torch.randn(*s, dtype=torch.bfloat16) * 0.05)(F, D)),
        }
    _B_in = _B_setup()

    return {
        "A_x": _A_in["x"],
        "A_wqkv": _A_in["wqkv"],
        "A_wo": _A_in["wo"],
        "B_x": _B_in["x"],
        "B_w_gate": _B_in["w_gate"],
        "B_w_up": _B_in["w_up"],
        "B_w_down": _B_in["w_down"],
    }

def reference(A_x, A_wqkv, A_wo, B_x, B_w_gate, B_w_up, B_w_down):
    def _A_ref(x, wqkv, wo):
        B, S, D = x.shape
        H = 32
        Dh = D // H
        qkv = (lambda x, *d: x.permute(*d))((x @ wqkv).reshape(B, S, 3, H, Dh), 2, 0, 3, 1, 4)
        q, k, v = qkv[0], qkv[1], qkv[2]
        scores = torch.einsum("bhqd,bhkd->bhqk", q, k) * (Dh ** -0.5)
        p = _softmax(scores, axis=-1)
        o = torch.einsum("bhqk,bhkd->bhqd", p, v)
        return (lambda x, *d: x.permute(*d))(o, 0, 2, 1, 3).reshape(B, S, D) @ wo

    def _B_ref(x, w_gate, w_up, w_down):
        g = torch.einsum("bsd,df->bsf", x, w_gate)
        u = torch.einsum("bsd,df->bsf", x, w_up)
        h = _sigmoid(g) * u
        return torch.einsum("bsf,fd->bsd", h, w_down)

    x = A_x
    xn = _layernorm(x, axis=-1)
    s = _A_ref(xn, A_wqkv, A_wo)
    g = _silu(_B_ref(xn, B_w_gate, B_w_up, B_w_down))
    return x + s * g
```

```python
import sys

NAME = "recurrent_scan__mha_block__glu_gated_glu__prompt"

MB = 1 << 20
QF = 0
KF = 2 * MB
VF = 4 * MB
OF = 6 * MB
HF = 8 * MB
WDF = 16 * MB
WOF = 18 * MB
YF = 20 * MB
WS_BYTES = 24 * MB

LOG2E = 1.4426950408889634


def f2u(x):
    import struct
    return struct.unpack("<I", struct.pack("<f", x))[0]


class Asm:
    def __init__(self):
        self.L = []

    def __call__(self, s):
        self.L.append("    " + s)

    def label(self, s):
        self.L.append(s + ":")

    def c(self, s):
        self.L.append("    ; " + s)

    def text(self):
        return "\n".join(self.L) + "\n"


def vr(a, n=1):
    return f"v{a}" if n == 1 else f"v[{a}:{a+n-1}]"


def sr(a, n=1):
    return f"s{a}" if n == 1 else f"s[{a}:{a+n-1}]"


def kernel_head(a, name):
    a.L.append(f".globl {name}")
    a.L.append(".p2align 8")
    a.L.append(f".type {name},@function")
    a.label(name)


def kernel_desc(name, nvgpr, nsgpr=102):
    nv = (nvgpr + 3) // 4 * 4
    return f""".p2align 6
.amdhsa_kernel {name}
  .amdhsa_next_free_vgpr {nv}
  .amdhsa_next_free_sgpr {nsgpr}
  .amdhsa_accum_offset {nv}
  .amdhsa_group_segment_fixed_size 0
  .amdhsa_kernarg_size 80
  .amdhsa_user_sgpr_count 2
  .amdhsa_user_sgpr_kernarg_segment_ptr 1
  .amdhsa_system_sgpr_workgroup_id_x 1
.end_amdhsa_kernel
"""


def load_kernargs(a):
    a("s_load_dwordx16 s[4:19], s[0:1], 0")
    a("s_load_dwordx4 s[20:23], s[0:1], 64")


def make_srd(a, d, base, nbytes):
    a(f"s_mov_b32 s{d}, s{base}")
    a(f"s_mov_b32 s{d+1}, s{base+1}")
    a(f"s_mov_b32 s{d+2}, {nbytes:#x}")
    a(f"s_mov_b32 s{d+3}, 0x00020000")


def mfma(a, d, A, B, C):
    c = "0" if C is None else vr(C, 16)
    a(f"v_mfma_f32_32x32x16_bf16 {vr(d,16)}, {vr(A,4)}, {vr(B,4)}, {c}")


K1_SLOT = 53248
K1_XOFF = 0
K1_P0 = 32768
K1_P1 = 32768 + 8192
K1_P2 = 32768 + 16384
K1_SM = 3 * K1_SLOT
K1_CS = K1_SM
K1_ST = K1_SM + 1024
K1_LDS = 163840


def gen_k1(a):
    name = "k1_kernel"
    kernel_head(a, name)
    a("s_cmp_ge_u32 s2, 256")
    a("s_cbranch_scc1 K1_EXIT")
    load_kernargs(a)
    a("v_lshrrev_b32 v2, 6, v0")
    a("v_and_b32 v1, 63, v0")
    a("v_readfirstlane_b32 s48, v2")
    a("s_and_b32 s51, s2, 7")
    a("s_lshr_b32 s52, s2, 3")
    a("s_and_b32 s49, s51, 1")
    a("s_lshl_b32 s49, s49, 2")
    a("s_and_b32 s53, s52, 3")
    a("s_add_u32 s49, s49, s53")
    a("s_lshr_b32 s50, s51, 1")
    a("s_lshl_b32 s50, s50, 3")
    a("s_lshr_b32 s53, s52, 2")
    a("s_add_u32 s50, s50, s53")
    a("s_lshl_b32 s54, s49, 3")
    a("s_add_u32 s54, s54, s48")
    a("v_lshlrev_b32 v3, 2, v0")
    a(f"v_add_u32 v3, {K1_CS}, v3")
    a("v_mov_b32 v4, 0")
    a("v_cmp_gt_u32 vcc, 160, v0")
    a("s_and_saveexec_b64 s[56:57], vcc")
    a("ds_write_b32 v3, v4")
    a("s_mov_b64 exec, s[56:57]")
    a("s_waitcnt lgkmcnt(0)")
    make_srd(a, 24, 4, 2048 * 512 * 2)
    make_srd(a, 36, 6, 512 * 1536 * 2)
    make_srd(a, 40, 22, WS_BYTES)
    a("s_cmp_ge_u32 s50, 28")
    a("s_cbranch_scc1 K1_TYPEB")
    gen_k1_body(a, "A")
    a("s_branch K1_EXIT")
    a.label("K1_TYPEB")
    gen_k1_body(a, "B")
    a.label("K1_EXIT")
    a("s_endpgm")
    return name, 224


def gen_k1_body(a, typ):
    T = "K1" + typ
    isA = typ == "A"
    pitch01 = 3584 if isA else 3072
    pitch2 = 3072
    if isA:
        make_srd(a, 28, 12, 512 * 1792 * 2)
        make_srd(a, 32, 14, 512 * 1792 * 2)
        make_srd(a, 44, 16, 1792 * 512 * 2)
    else:
        make_srd(a, 28, 6, 512 * 1536 * 2)
        make_srd(a, 32, 6, 512 * 1536 * 2)
        make_srd(a, 44, 8, 512 * 512 * 2)
    VXO = 4
    VP0, VP1, VP2 = 8, 9, 10
    VXA = 12
    VWA = 20
    VS1, VS2 = 30, 32
    VCS = 34
    VT = 40
    ACC = 64
    FX = 144
    FW = 152
    VSD = 192
    a("v_lshrrev_b32 v40, 3, v1")
    a("v_and_b32 v41, 7, v1")
    a("s_lshl_b32 s55, s54, 15")
    for i in range(4):
        a("v_lshrrev_b32 v42, 4, v1")
        a(f"v_add_u32 v42, {4*i}, v42")
        a("v_and_b32 v42, 7, v42")
        a("v_xor_b32 v42, v42, v41")
        a("v_lshlrev_b32 v42, 4, v42")
        a("v_lshl_add_u32 v42, v40, 10, v42")
        a(f"v_add_u32 v42, {8*i*1024 - i*1024}, v42")
        a(f"v_add_u32 v{VXO+i}, s55, v42")
    a("s_lshl_b32 s55, s48, 3")
    a("v_add_u32 v42, s55, v40")
    a("v_bfe_u32 v43, v1, 4, 1")
    if isA:
        a("s_lshl_b32 s56, s50, 7")
        a("s_mov_b32 s57, s56")
        a("v_lshlrev_b32 v44, 1, v43")
        a("v_xor_b32 v44, v44, v41")
        a("v_xor_b32 v45, 4, v44")
    else:
        a("s_sub_u32 s56, s50, 28")
        a("s_lshl_b32 s56, s56, 8")
        a("s_add_u32 s56, s56, 2048")
        a("s_add_u32 s57, s56, 128")
        a("v_lshlrev_b32 v44, 2, v43")
        a("v_xor_b32 v44, v44, v41")
        a("v_mov_b32 v45, v44")
    a(f"s_mov_b32 s58, {pitch01}")
    a("v_mul_lo_u32 v46, v42, s58")
    a(f"v_lshl_add_u32 v{VP0}, v44, 4, v46")
    a(f"v_add_u32 v{VP0}, s56, v{VP0}")
    a(f"v_lshl_add_u32 v{VP1}, v45, 4, v46")
    a(f"v_add_u32 v{VP1}, s57, v{VP1}")
    a("v_lshrrev_b32 v42, 2, v1")
    a("v_and_b32 v42, 7, v42")
    a("v_add_u32 v42, s55, v42")
    a(f"s_mov_b32 s58, {pitch2}")
    a("v_mul_lo_u32 v46, v42, s58")
    a("v_and_b32 v44, 3, v1")
    a(f"v_lshl_add_u32 v{VP2}, v44, 4, v46")
    a("s_lshl_b32 s56, s50, 6")
    a(f"v_add_u32 v{VP2}, s56, v{VP2}")
    a("s_lshl_b32 s60, s48, 12")
    a("s_lshl_b32 s61, s48, 10")
    a(f"s_add_u32 s62, s61, {K1_P1}")
    a(f"s_add_u32 s61, s61, {K1_P0}")
    a("s_lshl_b32 s63, s48, 9")
    a(f"s_add_u32 s63, s63, {K1_P2}")
    a("s_mov_b32 s66, -1")
    a("s_mov_b32 s67, 0")

    def dma_stage(s):
        sl = (s % 3) * K1_SLOT
        a(f"s_add_u32 m0, s60, {sl}")
        a(f"s_mov_b32 s64, {s*128}")
        for i in range(4):
            a(f"buffer_load_dwordx4 v{VXO+i}, s[24:27], s64 offen offset:{i*1024} lds")
        a(f"s_add_u32 m0, s61, {sl}")
        a(f"s_mov_b32 s65, {s*64*pitch01}")
        a(f"buffer_load_dwordx4 v{VP0}, s[28:31], s65 offen lds")
        a(f"s_add_u32 m0, s62, {sl}")
        a(f"s_mov_b32 s64, {s*64*pitch2}")
        a(f"buffer_load_dwordx4 v{VP1}, s[32:35], s65 offen lds")
        a(f"s_add_u32 m0, s63, {sl}")
        a("s_mov_b64 exec, s[66:67]")
        a(f"buffer_load_dwordx4 v{VP2}, s[36:39], s64 offen lds")
        a("s_mov_b64 exec, -1")

    dma_stage(0)
    dma_stage(1)
    a("v_and_b32 v40, 31, v1")
    a("v_lshrrev_b32 v41, 5, v1")
    a("v_bfe_u32 v42, v1, 1, 3")
    a("v_xor_b32 v42, v42, v41")
    a("v_lshlrev_b32 v43, 7, v40")
    a("v_add_u32 v43, s60, v43")
    for kk in range(4):
        a(f"v_xor_b32 v44, {2*kk}, v42")
        a(f"v_lshl_add_u32 v{VXA+kk}, v44, 4, v43")
        a(f"v_add_u32 v{VXA+4+kk}, {2*K1_SLOT}, v{VXA+kk}")
    a("v_bfe_u32 v44, v1, 4, 1")
    a("v_bfe_u32 v45, v1, 2, 2")
    a("v_and_b32 v46, 3, v1")
    a("v_lshl_add_u32 v47, v41, 3, v45")
    a("v_bfe_u32 v48, v1, 3, 1")
    if isA:
        a("v_lshlrev_b32 v49, 7, v47")
        a("v_lshl_add_u32 v49, v46, 3, v49")
        a("v_lshl_add_u32 v49, v44, 13, v49")
        a(f"v_add_u32 v49, {K1_P0}, v49")
        a("v_lshl_or_b32 v50, v44, 1, v48")
        for j in range(4):
            a(f"v_xor_b32 v51, {j}, v50")
            a(f"v_lshl_add_u32 v{VWA+j}, v51, 5, v49")
    else:
        a("v_lshlrev_b32 v49, 7, v47")
        a("v_lshl_add_u32 v49, v46, 3, v49")
        a("v_lshl_add_u32 v49, v44, 5, v49")
        for j in range(4):
            a(f"v_xor_b32 v51, {j&1}, v48")
            a(f"v_lshl_add_u32 v{VWA+j}, v51, 6, v49")
            a(f"v_add_u32 v{VWA+j}, {K1_P0 + (j>>1)*8192}, v{VWA+j}")
    a("v_lshlrev_b32 v49, 6, v47")
    a("v_lshl_add_u32 v49, v46, 3, v49")
    a("v_lshl_add_u32 v49, v44, 5, v49")
    a(f"v_add_u32 v{VWA+4}, {K1_P2}, v49")
    for j in range(5):
        a(f"v_add_u32 v{VWA+5+j}, {2*K1_SLOT}, v{VWA+j}")
    for r in list(range(VS1, VS1 + 4)) + list(range(VCS, VCS + 5)):
        a(f"v_mov_b32 v{r}, 0")
    a("s_mov_b32 s68, 0x3f803f80")
    a(f"v_lshlrev_b32 v{VT+12}, 2, v40")
    a(f"v_add_u32 v{VT+12}, {K1_CS}, v{VT+12}")
    VCSA = VT + 12
    VSA = VT + 13
    a(f"v_lshlrev_b32 v{VSA}, 12, v41")
    a(f"v_lshl_add_u32 v{VSA}, v40, 1, v{VSA}")
    nside = 8 if isA else 16

    def side_loads():
        if isA:
            a("s_mul_i32 s70, s49, 28")
            a("s_add_u32 s70, s70, s50")
            a("s_lshl_b32 s70, s70, 3")
            a("s_add_u32 s70, s70, s48")
        else:
            a("s_lshl_b32 s70, s49, 2")
            a("s_add_u32 s70, s70, s50")
            a("s_sub_u32 s70, s70, 28")
            a("s_lshl_b32 s70, s70, 3")
            a("s_add_u32 s70, s70, s48")
            a("s_lshl_b32 s70, s70, 1")
        a("s_lshr_b32 s71, s70, 4")
        a("s_lshl_b32 s71, s71, 14")
        a("s_and_b32 s72, s70, 15")
        a("s_lshl_b32 s72, s72, 6")
        a("s_add_u32 s71, s71, s72")
        a("s_add_u32 s72, s71, 8192")
        for e in range(nside // 8):
            for j in range(8):
                so = "s71" if j < 4 else "s72"
                a(f"buffer_load_ushort v{VSD+8*e+j}, v{VSA}, s[44:47], {so} offen offset:{(j&3)*1024 + e*64}")

    def xread(s, kk):
        sl = s % 3
        base = VXA + (4 if sl == 2 else 0) + kk
        off = K1_SLOT if sl == 1 else 0
        a(f"ds_read_b128 {vr(FX + 4*(kk&1), 4)}, v{base} offset:{off}")

    def wread(s, kk, j):
        sl = s % 3
        base = VWA + (5 if sl == 2 else 0) + j
        off = K1_SLOT if sl == 1 else 0
        d = FW + 20 * (kk & 1) + 4 * j
        if j < 4:
            o0, o1 = off + kk * 2048, off + kk * 2048 + 512
        else:
            o0, o1 = off + kk * 1024, off + kk * 1024 + 256
        a(f"ds_read_b64_tr_b16 {vr(d,2)}, v{base} offset:{o0}")
        a(f"ds_read_b64_tr_b16 {vr(d+2,2)}, v{base} offset:{o1}")

    for s in range(8):
        a.c(f"stage {s}")
        if s < 7:
            a("s_waitcnt vmcnt(7)")
        else:
            a(f"s_waitcnt vmcnt({nside})")
        a("s_barrier")
        xread(s, 0)
        for j in range(5):
            wread(s, 0, j)
        if s + 2 <= 7:
            dma_stage(s + 2)
        if s == 6:
            side_loads()
        pend = [("x", 0)] + [w for j in range(5) for w in (("w", 0, j), ("w", 0, j))]
        for kk in range(4):
            for j in range(5):
                need = [i for i, t in enumerate(pend) if t == ("x", kk) or t == ("w", kk, j)]
                if need:
                    last = max(need)
                    n_after = len(pend) - 1 - last
                    a(f"s_waitcnt lgkmcnt({n_after})")
                    pend = pend[last + 1:]
                fw = FW + 20 * (kk & 1) + 4 * j
                fx = FX + 4 * (kk & 1)
                acc = ACC + 16 * j
                C = None if (s == 0 and kk == 0) else acc
                if (not isA) and j < 4:
                    mfma(a, acc, fx, fw, C)
                else:
                    mfma(a, acc, fw, fx, C)
                if kk < 3:
                    if j == 0:
                        xread(s, kk + 1)
                        pend.append(("x", kk + 1))
                    wread(s, kk + 1, j)
                    pend += [("w", kk + 1, j)] * 2
                if j < 4:
                    a(f"v_dot2c_f32_bf16 v{VS1 + (j&1)}, s68, v{fx+j}")
                    a(f"v_dot2c_f32_bf16 v{VS2 + (j&1)}, v{fx+j}, v{fx+j}")
            a(f"s_cmp_lg_u32 s48, {s}")
            a(f"s_cbranch_scc1 {T}_CS{s}_{kk}")
            for r in range(4):
                for j in range(5):
                    a(f"v_dot2c_f32_bf16 v{VCS+j}, s68, v{FW + 20*(kk&1) + 4*j + r}")
            if kk == 3:
                a("s_nop 2")
                for j in range(5):
                    a(f"ds_add_f32 v{VCSA}, v{VCS+j} offset:{j*128}")
                a("s_waitcnt lgkmcnt(0)")
            a.label(f"{T}_CS{s}_{kk}")
    a.c("epilogue")
    a("s_barrier")
    a(f"v_add_f32 v40, v{VS1}, v{VS1+1}")
    a(f"v_add_f32 v42, v{VS2}, v{VS2+1}")
    a("v_mov_b32 v41, v40")
    a("v_mov_b32 v43, v42")
    a("s_nop 1")
    a("v_permlane32_swap_b32 v40, v41")
    a("v_permlane32_swap_b32 v42, v43")
    a("s_nop 1")
    a("v_add_f32 v40, v40, v41")
    a("v_add_f32 v42, v42, v43")
    a(f"v_mul_f32 v40, {f2u(1.0/512):#x}, v40")
    a(f"v_mul_f32 v42, {f2u(1.0/512):#x}, v42")
    a("v_fma_f32 v42, -v40, v40, v42")
    a("v_max_f32 v42, 0, v42")
    a("v_cvt_pk_bf16_f32 v41, v40, v42")
    a("v_lshlrev_b32 v40, 16, v41")
    a("v_and_b32 v42, 0xffff0000, v41")
    a(f"v_add_f32 v42, {f2u(1e-5):#x}, v42")
    a("v_cvt_pk_bf16_f32 v42, v42, v42")
    a("v_and_b32 v42, 0xffff0000, v42")
    a("v_sqrt_f32 v42, v42")
    a("s_nop 0")
    a("v_cvt_pk_bf16_f32 v42, v42, v42")
    a("v_and_b32 v42, 0xffff0000, v42")
    a("v_rcp_f32 v41, v42")
    a("s_nop 0")
    VM, VA = 40, 41
    a("v_lshlrev_b32 v42, 4, v1")
    VL16 = 42
    a("v_lshrrev_b32 v43, 5, v1")
    a("v_lshlrev_b32 v43, 4, v43")
    a(f"v_add_u32 v43, {K1_CS}, v43")
    VCR = 43
    CSB = FW

    def cs_read(j, dst):
        for g in range(4):
            a(f"ds_read_b128 {vr(dst+4*g,4)}, v{VCR} offset:{j*128 + g*32}")

    def qk_epilogue():
        acc = ACC + 64
        cs_read(4, CSB)
        a(f"s_mov_b32 s70, {f2u(0.25*LOG2E):#x}")
        a("s_cmp_lt_u32 s50, 16")
        a("s_cselect_b32 s70, s70, 1.0")
        a(f"v_mul_f32 v44, s70, v{VA}")
        a("s_lshl_b32 s71, s50, 17")
        a("s_lshl_b32 s72, s54, 10")
        a("s_add_u32 s71, s71, s72")
        a(f"s_add_u32 s71, s71, {QF}")
        a("s_add_u32 s72, s71, 65536")
        a("s_waitcnt lgkmcnt(0)")
        for r in range(16):
            a(f"v_fma_f32 v{acc+r}, -v{VM}, v{CSB+r}, v{acc+r}")
            a(f"v_mul_f32 v{acc+r}, v44, v{acc+r}")
        for r in range(8):
            a(f"v_cvt_pk_bf16_f32 v{CSB+16+r}, v{acc+2*r}, v{acc+2*r+1}")
        a(f"buffer_store_dwordx4 {vr(CSB+16,4)}, v{VL16}, s[40:43], s71 offen")
        a(f"buffer_store_dwordx4 {vr(CSB+20,4)}, v{VL16}, s[40:43], s72 offen")

    a("s_nop 7")
    if isA:
        a(f"v_mul_f32 v45, {f2u(-LOG2E):#x}, v{VA}")
        a("s_mul_i32 s73, s54, 112")
        a("s_lshl_b32 s74, s50, 2")
        a("s_add_u32 s73, s73, s74")
        a("s_lshl_b32 s73, s73, 10")
        a(f"s_add_u32 s73, s73, {HF}")
        for j in range(4):
            acc = ACC + 16 * j
            cb = CSB + 16 * (j & 1)
            cs_read(j, cb)
            a("s_waitcnt lgkmcnt(0)")
            for r in range(8):
                a(f"v_fma_f32 v{acc+r}, -v{VM}, v{cb+r}, v{acc+r}")
                a(f"v_mul_f32 v{acc+r}, v45, v{acc+r}")
                a(f"v_exp_f32 v{acc+r}, v{acc+r}")
                a(f"v_fma_f32 v{acc+8+r}, -v{VM}, v{cb+8+r}, v{acc+8+r}")
                a(f"v_add_f32 v{acc+r}, 1.0, v{acc+r}")
                a(f"v_rcp_f32 v{acc+r}, v{acc+r}")
                a(f"v_mul_f32 v{acc+8+r}, v{VA}, v{acc+8+r}")
                a(f"v_mul_f32 v{acc+r}, v{acc+r}, v{acc+8+r}")
            for r in range(4):
                a(f"v_cvt_pk_bf16_f32 v{acc+8+r}, v{acc+2*r}, v{acc+2*r+1}")
            a(f"buffer_store_dwordx4 {vr(acc+8,4)}, v{VL16}, s[40:43], s73 offen offset:{j*1024}")
        qk_epilogue()
    else:
        a("s_lshl_b32 s73, s48, 8")
        a(f"s_add_u32 s73, s73, {K1_ST}")
        a("v_and_b32 v44, 31, v1")
        a("v_lshlrev_b32 v44, 2, v44")
        a("v_add_u32 v44, s73, v44")
        a(f"ds_write_b32 v44, v{VM}")
        a(f"ds_write_b32 v44, v{VA} offset:128")
        a("v_lshrrev_b32 v45, 5, v1")
        a("v_lshlrev_b32 v45, 4, v45")
        a("v_add_u32 v45, s73, v45")
        a("s_waitcnt lgkmcnt(0)")
        MR, AR = CSB, CSB + 16
        for g in range(4):
            a(f"ds_read_b128 {vr(MR+4*g,4)}, v45 offset:{g*32}")
            a(f"ds_read_b128 {vr(AR+4*g,4)}, v45 offset:{128+g*32}")
        for j in range(4):
            a(f"ds_read_b32 v{46+j}, v{VCSA} offset:{j*128}")
        a("v_bfe_u32 v50, v1, 4, 1")
        a("v_lshlrev_b32 v50, 16, v50")
        a("v_lshrrev_b32 v51, 5, v1")
        a("v_lshl_add_u32 v50, v51, 8, v50")
        a("v_and_b32 v51, 15, v1")
        a("v_lshl_add_u32 v50, v51, 4, v50")
        a("s_sub_u32 s73, s50, 28")
        a("s_lshl_b32 s73, s73, 19")
        a("s_lshl_b32 s74, s54, 10")
        a("s_add_u32 s73, s73, s74")
        a(f"s_add_u32 s73, s73, {VF}")
        a("s_waitcnt lgkmcnt(0)")
        for j in range(4):
            acc = ACC + 16 * j
            for r in range(16):
                a(f"v_fma_f32 v{acc+r}, -v{MR+r}, v{46+j}, v{acc+r}")
                a(f"v_mul_f32 v{acc+r}, v{AR+r}, v{acc+r}")
            for r in range(8):
                a(f"v_cvt_pk_bf16_f32 v{acc+r}, v{acc+2*r}, v{acc+2*r+1}")
            a(f"buffer_store_dwordx4 {vr(acc,4)}, v50, s[40:43], s73 offen")
            a(f"buffer_store_dwordx4 {vr(acc+4,4)}, v50, s[40:43], s73 offen offset:512")
            a("s_add_u32 s73, s73, 0x20000")
        qk_epilogue()
    nst = (4 + 2) if isA else (8 + 2)
    a(f"s_waitcnt vmcnt({nst})")
    if isA:
        a("s_mul_i32 s70, s49, 28")
        a("s_add_u32 s70, s70, s50")
        a("s_lshl_b32 s70, s70, 3")
        a("s_add_u32 s70, s70, s48")
        a("s_lshl_b32 s70, s70, 10")
        a(f"s_add_u32 s70, s70, {WDF}")
    else:
        a("s_lshl_b32 s70, s49, 2")
        a("s_add_u32 s70, s70, s50")
        a("s_sub_u32 s70, s70, 28")
        a("s_lshl_b32 s70, s70, 3")
        a("s_add_u32 s70, s70, s48")
        a("s_lshl_b32 s70, s70, 11")
        a(f"s_add_u32 s70, s70, {WOF}")
    for e in range(nside // 8):
        for r in range(4):
            a(f"v_lshl_or_b32 v{208+4*e+r}, v{VSD+8*e+2*r+1}, 16, v{VSD+8*e+2*r}")
        a(f"buffer_store_dwordx4 {vr(208+4*e,4)}, v{VL16}, s[40:43], s70 offen offset:{e*1024}")


K2_LDS = 131072


def gen_k2(a):
    name = "k2_kernel"
    kernel_head(a, name)
    a("s_cmp_ge_u32 s2, 256")
    a("s_cbranch_scc1 K2_EXIT")
    a("s_load_dwordx2 s[22:23], s[0:1], 72")
    a("v_lshrrev_b32 v2, 6, v0")
    a("v_and_b32 v1, 63, v0")
    a("v_readfirstlane_b32 s48, v2")
    a("s_and_b32 s49, s2, 7")
    a("s_bfe_u32 s50, s2, 0x20003")
    a("s_lshl_b32 s50, s50, 3")
    a("s_add_u32 s49, s49, s50")
    a("s_lshr_b32 s50, s2, 5")
    a("s_lshl_b32 s50, s50, 3")
    a("s_add_u32 s50, s50, s48")
    a("v_lshlrev_b32 v2, 4, v1")
    a("s_waitcnt lgkmcnt(0)")
    make_srd(a, 40, 22, WS_BYTES)
    VQ = 4
    KB = 8
    VB = 16
    PB = 32
    NM = 48
    SB = 64
    OA = 96
    VKA, VVA = 40, 41
    a("s_lshl_b32 s51, s49, 16")
    a("s_lshl_b32 s52, s50, 10")
    a("s_add_u32 s52, s52, s51")
    a(f"s_add_u32 s53, s52, {QF}")
    a(f"buffer_load_dwordx4 {vr(VQ,4)}, v2, s[40:43], s53 offen")
    a("s_lshl_b32 s54, s48, 10")
    a("s_add_u32 s55, s51, s54")
    a(f"s_add_u32 s56, s55, {VF}")
    a(f"s_add_u32 s55, s55, {KF}")
    for j in range(8):
        a(f"s_add_u32 m0, s54, {j*8192}")
        a(f"s_add_u32 s57, s55, {j*8192}")
        a("buffer_load_dwordx4 v2, s[40:43], s57 offen lds")
        a(f"s_add_u32 m0, s54, {65536 + j*8192}")
        a(f"s_add_u32 s58, s56, {j*8192}")
        a("buffer_load_dwordx4 v2, s[40:43], s58 offen lds")
    a(f"v_mov_b32 v{VKA}, v2")
    a("v_lshrrev_b32 v3, 5, v1")
    a("v_and_b32 v42, 15, v1")
    a("v_lshlrev_b32 v42, 4, v42")
    a("v_lshl_add_u32 v42, v3, 8, v42")
    a(f"v_add_u32 v{VVA}, 0x10000, v42")
    for r in range(16):
        a(f"v_mov_b32 v{VB+r}, 0x3f803f80")
    a("s_mov_b32 s60, 0x0000ffff")
    a("s_mov_b32 s61, 0x0000ffff")

    def kread(i, rel):
        a(f"ds_read_b128 {vr(KB+4*(i&1),4)}, v{VKA} offset:{rel*1024}")

    def vread(i, rel):
        a("s_mov_b64 exec, s[60:61]")
        a(f"ds_read_b128 {vr(VB+8*(i&1),4)}, v{VVA} offset:{rel*1024}")
        a(f"ds_read_b128 {vr(VB+8*(i&1)+4,4)}, v{VVA} offset:{rel*1024+512}")
        a("s_mov_b64 exec, -1")

    a("s_waitcnt vmcnt(14)")
    a("s_barrier")
    kread(0, 0)
    kread(1, 1)
    vread(0, 0)
    a("s_waitcnt lgkmcnt(3)")
    mfma(a, SB, KB, VQ, None)
    a("s_nop 15")
    a(f"v_max3_f32 v44, v{SB}, v{SB+1}, v{SB+2}")
    for r in range(3, 15, 2):
        a(f"v_max3_f32 v44, v44, v{SB+r}, v{SB+r+1}")
    a(f"v_max_f32 v44, v44, v{SB+15}")
    a("v_mov_b32 v45, v44")
    a("s_nop 1")
    a("v_permlane32_swap_b32 v44, v45")
    a("s_nop 1")
    a("v_max_f32 v44, v44, v45")
    for r in range(16):
        a(f"v_sub_f32 v{NM+r}, 0, v44")
    for r in range(16):
        a(f"v_mov_b32 v{OA+r}, 0")
    a("s_nop 1")
    mfma(a, SB, KB, VQ, NM)
    a("s_nop 7")

    def step(i, ii, first=False, last=False, has_k=True, has_v=True):
        S = SB + 16 * (i & 1)
        Sn = SB + 16 * ((i + 1) & 1)
        a("s_waitcnt lgkmcnt(0)")
        if not last:
            mfma(a, Sn, KB + 4 * ((i + 1) & 1), VQ, NM)
        else:
            a("s_nop 0")
        if not first:
            mfma(a, OA, VB + 8 * ((i - 1) & 1) + 4, PB + 4, OA)
        if has_k:
            kread(i + 2, ii + 2)
        if has_v:
            vread(i + 1, ii + 1)
        for r in range(16):
            a(f"v_exp_f32 v{S+r}, v{S+r}")
            if r >= 2 and r % 2 == 0:
                p = (r - 2) // 2
                a(f"v_cvt_pk_bf16_f32 v{PB+p}, v{S+r-2}, v{S+r-1}")
            if r == 10:
                mfma(a, OA, VB + 8 * (i & 1), PB, OA)
        a("s_nop 0")
        a(f"v_cvt_pk_bf16_f32 v{PB+7}, v{S+14}, v{S+15}")

    for i in range(8):
        if i == 6:
            a("s_waitcnt vmcnt(0)")
            a("s_barrier")
        step(i, i, first=(i == 0))
    a(f"v_add_u32 v{VKA}, 8192, v{VKA}")
    a(f"v_add_u32 v{VVA}, 8192, v{VVA}")
    a("s_mov_b32 s62, 6")
    a.label("K2_LOOP")
    for i in range(8):
        step(i, i)
    a(f"v_add_u32 v{VKA}, 8192, v{VKA}")
    a(f"v_add_u32 v{VVA}, 8192, v{VVA}")
    a("s_sub_u32 s62, s62, 1")
    a("s_cmp_lg_u32 s62, 0")
    a("s_cbranch_scc1 K2_LOOP")
    for i in range(8):
        step(i, i, last=(i == 7), has_k=(i < 6), has_v=(i < 7))
    a("s_nop 1")
    mfma(a, OA, VB + 8 + 4, PB + 4, OA)
    a("s_nop 15")
    a(f"v_max3_f32 v44, |v{OA}|, |v{OA+1}|, |v{OA+2}|")
    a(f"v_max3_f32 v44, v44, |v{OA+3}|, |v{OA+4}|")
    a(f"v_max3_f32 v44, v44, |v{OA+5}|, |v{OA+6}|")
    a(f"v_add_f32 v45, v{OA}, v{OA+1}")
    for r in range(2, 8):
        a(f"v_add_f32 v45, v45, v{OA+r}")
    a(f"v_max3_f32 v44, v44, |v{OA+7}|, v{OA+8}")
    a("v_mul_f32 v45, 0, v45")
    a("v_add_f32 v44, v44, v45")
    a(f"v_mov_b32 v46, {f2u(2.0**100):#x}")
    a("v_cmp_nlt_f32 vcc, v44, v46")
    a(f"v_cmp_nlt_f32 s[62:63], v{OA+8}, v46")
    a("s_or_b64 vcc, vcc, s[62:63]")
    a("s_cmp_lg_u64 vcc, 0")
    a("s_cbranch_scc1 K2_SLOW")
    a.label("K2_FIN")
    a(f"v_rcp_f32 v44, v{OA+8}")
    a("s_nop 0")
    for r in range(8):
        a(f"v_mul_f32 v{OA+r}, v44, v{OA+r}")
    for r in range(4):
        a(f"v_cvt_pk_bf16_f32 v{PB+r}, v{OA+2*r}, v{OA+2*r+1}")
    a("s_lshl_b32 s53, s50, 5")
    a("s_add_u32 s53, s53, s49")
    a("s_lshl_b32 s53, s53, 10")
    a(f"s_add_u32 s53, s53, {OF}")
    a(f"buffer_store_dwordx4 {vr(PB,4)}, v2, s[40:43], s53 offen")
    a.label("K2_EXIT")
    a("s_endpgm")
    a.label("K2_SLOW")
    a(f"v_mov_b32 v{VKA}, v2")
    a(f"v_add_u32 v{VVA}, 0x10000, v42")
    for r in range(16):
        a(f"v_mov_b32 v{OA+r}, 0")
    a(f"v_mov_b32 v47, {f2u(-3.0e38):#x}")
    a("s_mov_b32 s62, 64")
    a.label("K2_SLOOP")
    kread(0, 0)
    vread(0, 0)
    a("s_waitcnt lgkmcnt(0)")
    mfma(a, SB, KB, VQ, None)
    a("s_nop 15")
    a(f"v_max3_f32 v44, v{SB}, v{SB+1}, v{SB+2}")
    for r in range(3, 15, 2):
        a(f"v_max3_f32 v44, v44, v{SB+r}, v{SB+r+1}")
    a(f"v_max3_f32 v44, v44, v{SB+15}, v47")
    a("v_mov_b32 v45, v44")
    a("s_nop 1")
    a("v_permlane32_swap_b32 v44, v45")
    a("s_nop 1")
    a("v_max_f32 v44, v44, v45")
    a("v_sub_f32 v45, v47, v44")
    a("v_exp_f32 v45, v45")
    a("v_mov_b32 v47, v44")
    for r in range(16):
        a(f"v_mul_f32 v{OA+r}, v45, v{OA+r}")
    for r in range(16):
        a(f"v_sub_f32 v{SB+r}, v{SB+r}, v44")
        a(f"v_exp_f32 v{SB+r}, v{SB+r}")
    a("s_nop 0")
    for r in range(8):
        a(f"v_cvt_pk_bf16_f32 v{PB+r}, v{SB+2*r}, v{SB+2*r+1}")
    a("s_nop 1")
    mfma(a, OA, VB, PB, OA)
    mfma(a, OA, VB + 4, PB + 4, OA)
    a(f"v_add_u32 v{VKA}, 1024, v{VKA}")
    a(f"v_add_u32 v{VVA}, 1024, v{VVA}")
    a("s_nop 15")
    a("s_sub_u32 s62, s62, 1")
    a("s_cmp_lg_u32 s62, 0")
    a("s_cbranch_scc1 K2_SLOOP")
    a("s_branch K2_FIN")
    return name, 112


def gen_k3(a):
    name = "k3_kernel"
    kernel_head(a, name)
    a("s_cmp_ge_u32 s2, 256")
    a("s_cbranch_scc1 K3_EXIT")
    load_kernargs(a)
    a("v_lshrrev_b32 v2, 6, v0")
    a("v_and_b32 v1, 63, v0")
    a("v_readfirstlane_b32 s48, v2")
    a("s_and_b32 s49, s2, 7")
    a("s_lshl_b32 s49, s49, 2")
    a("s_bfe_u32 s50, s2, 0x20003")
    a("s_add_u32 s49, s49, s50")
    a("s_lshr_b32 s50, s2, 5")
    a("s_lshl_b32 s49, s49, 1")
    a("s_and_b32 s51, s48, 1")
    a("s_add_u32 s49, s49, s51")
    a("s_lshl_b32 s50, s50, 1")
    a("s_lshr_b32 s51, s48, 1")
    a("s_add_u32 s50, s50, s51")
    a("v_lshlrev_b32 v2, 4, v1")
    a("s_waitcnt lgkmcnt(0)")
    make_srd(a, 40, 22, WS_BYTES)
    make_srd(a, 24, 4, 2048 * 512 * 2)
    make_srd(a, 28, 18, 2048 * 512 * 2)
    AY, AS = 16, 32
    D = 16
    FB = 64
    a("s_mul_i32 s52, s49, 112")
    a("s_lshl_b32 s52, s52, 10")
    a(f"s_add_u32 s52, s52, {HF}")
    a("s_lshl_b32 s53, s50, 10")
    a(f"s_add_u32 s54, s53, {WOF}")
    a(f"s_add_u32 s53, s53, {WDF}")
    a("s_lshl_b32 s55, s49, 15")
    a(f"s_add_u32 s55, s55, {OF}")
    NT = 144

    def issue(k):
        sl = FB + 8 * (k % D)
        if k < 112:
            a(f"s_add_u32 s56, s53, {k*16384}")
            a(f"s_add_u32 s57, s52, {k*1024}")
        else:
            a(f"s_add_u32 s56, s54, {(k-112)*16384}")
            a(f"s_add_u32 s57, s55, {(k-112)*1024}")
        a(f"buffer_load_dwordx4 {vr(sl,4)}, v2, s[40:43], s56 offen")
        a(f"buffer_load_dwordx4 {vr(sl+4,4)}, v2, s[40:43], s57 offen")

    for k in range(D):
        issue(k)
    a("v_and_b32 v3, 31, v1")
    a("v_lshlrev_b32 v3, 10, v3")
    a("v_lshrrev_b32 v4, 5, v1")
    a("v_lshl_add_u32 v3, v4, 3, v3")
    a("s_lshl_b32 s58, s49, 15")
    a("s_lshl_b32 s59, s50, 6")
    a("s_add_u32 s58, s58, s59")
    for k in range(NT):
        rem = min(NT - 1 - k, D - 1)
        extra = 4 if k + D > NT else 0
        a(f"s_waitcnt vmcnt({2*rem + extra})")
        sl = FB + 8 * (k % D)
        acc = AY if k < 112 else AS
        mfma(a, acc, sl, sl + 4, None if k in (0, 112) else acc)
        if k + D < NT:
            issue(k + D)
        if k + D == NT:
            for g in range(4):
                a(f"buffer_load_dwordx2 {vr(48+2*g,2)}, v3, s[24:27], s58 offen offset:{g*16}")
    for r in range(16):
        a(f"v_mul_f32 v{FB+r}, {f2u(-LOG2E):#x}, v{AY+r}")
        a(f"v_exp_f32 v{FB+r}, v{FB+r}")
        a("s_nop 0")
        a(f"v_add_f32 v{FB+r}, 1.0, v{FB+r}")
        a(f"v_rcp_f32 v{FB+r}, v{FB+r}")
        a("s_nop 0")
        a(f"v_mul_f32 v{AY+r}, v{AY+r}, v{FB+r}")
    a("s_waitcnt vmcnt(0)")
    for g in range(4):
        for p in range(2):
            xr = 48 + 2 * g + p
            r = 4 * g + 2 * p
            a(f"v_lshlrev_b32 v56, 16, v{xr}")
            a(f"v_and_b32 v57, 0xffff0000, v{xr}")
            a(f"v_fma_f32 v56, v{AS+r}, v{AY+r}, v56")
            a(f"v_fma_f32 v57, v{AS+r+1}, v{AY+r+1}, v57")
            a(f"v_cvt_pk_bf16_f32 v{xr}, v56, v57")
        a(f"buffer_store_dwordx2 {vr(48+2*g,2)}, v3, s[28:31], s58 offen offset:{g*16}")
    a.label("K3_EXIT")
    a("s_endpgm")
    return name, 192


def main():
    out = sys.argv[1] if len(sys.argv) > 1 else f"cdna_kernels/{NAME}.s"
    a = Asm()
    ks = [gen_k1(a), gen_k2(a), gen_k3(a)]
    hdr = f"""; {NAME}: generated by gen/gen1.py (hand-designed kernels)
; @launch kernel=k1_kernel grid=(256,1,1) block=(512,1,1) lds={K1_LDS}
; @launch kernel=k2_kernel grid=(256,1,1) block=(512,1,1) lds={K2_LDS}
; @launch kernel=k3_kernel grid=(256,1,1) block=(256,1,1) lds=0
.amdgcn_target "amdgcn-amd-amdhsa--gfx950"
.text
"""
    txt = hdr + a.text() + '.section .rodata,"a"\n' + "".join(kernel_desc(n, v) for n, v in ks)
    open(out, "w").write(txt)
    print("wrote", out, len(txt), "bytes")


if __name__ == "__main__":
    main()
```
